```python
import torch

def _softmax(x, axis=-1):
    return torch.softmax(x, dim=axis)
def _gelu(x):
    return torch.nn.functional.gelu(x, approximate="tanh")
def _silu(x):
    return torch.nn.functional.silu(x)
def _sigmoid(x):
    return torch.sigmoid(x)
def _layernorm(x, axis=-1, eps=1e-5):
    m = x.mean(dim=axis, keepdim=True)
    v = x.var(dim=axis, keepdim=True, unbiased=False)
    return (x - m) / torch.sqrt(v + eps)
def _scatter_add(tgt, idx, src, axis=0):
    return tgt.clone().index_add_(axis, idx, src)
def _segment_sum(src, seg, n):
    out = torch.zeros((n,) + src.shape[1:], dtype=src.dtype)
    return out.index_add_(0, seg, src)
def _pad(x, pw):
    flat = tuple(v for pair in reversed(pw) for v in pair)
    return torch.nn.functional.pad(x, flat)

kernel_name = 'standalone__mha_block_cached__near_ridge'

def setup_inputs():

    _w = (lambda a: (lambda t: t.to(torch.bfloat16) if t.is_floating_point() else t)(torch.as_tensor(a)))
    B, Sq, D = 8, 144, 448
    H, Sk, Dh = 16, 2048, 256
    return {
        "x": _w((lambda *s: torch.randn(*s, dtype=torch.bfloat16) * 0.8)(B, Sq, D)),
        "k_cache": _w((lambda *s: torch.randn(*s, dtype=torch.bfloat16) * 0.8)(B, H, Sk, Dh)),
        "v_cache": _w((lambda *s: torch.randn(*s, dtype=torch.bfloat16) * 0.05)(B, H, Sk, Dh)),
        "wq": _w((lambda *s: torch.randn(*s, dtype=torch.bfloat16) * 0.8)(D, H * Dh) * (D ** -0.5)),
        "wo": _w((lambda *s: torch.randn(*s, dtype=torch.bfloat16) * 0.05)(H * Dh, D) * ((H * Dh) ** -0.5)),
    }

def reference(x, k_cache, v_cache, wq, wo):
    B, Sq, D = x.shape
    H, Dh = 16, 256
    q = (lambda x, *d: x.permute(*d))((x @ wq).reshape(B, Sq, H, Dh), 0, 2, 1, 3)
    scores = torch.einsum("bhqd,bhkd->bhqk", q, k_cache) * (Dh ** -0.5)
    p = _softmax(scores, axis=-1)
    o = torch.einsum("bhqk,bhkd->bhqd", p, v_cache)
    return (lambda x, *d: x.permute(*d))(o, 0, 2, 1, 3).reshape(B, Sq, H * Dh) @ wo
```

```python
import sys, math

NAME = "standalone__mha_block_cached__near_ridge"
SLOT = 16896
NSLOT = 9
MISC = SLOT * NSLOT
READY = MISC
DONE = MISC + 256
XS = MISC + 1024
LDS_BYTES = 163840
PART_BYTES = 129024
LSE_OFF = 256 * PART_BYTES
WS_USED = LSE_OFF + 128 * 144 * 16
STAMP_OFF = 500 * 1024 * 1024
THR = 2.0 ** 30
QSCALE = math.log2(math.e) / 16.0


def f2u(x):
    import struct
    return struct.unpack("<I", struct.pack("<f", x))[0]


class Asm:
    def __init__(self):
        self.L = []
        self.q = []

    def __call__(self, s):
        for l in s.split("\n"):
            self.L.append(l)

    def lds(self, s, tag=None):
        self.L.append(s)
        self.q.append(tag)
        assert len(self.q) <= 15, self.q

    def wait_str(self, tag):
        idx = [i for i, t in enumerate(self.q) if t == tag]
        if not idx:
            return None
        last = idx[-1]
        n = len(self.q) - 1 - last
        assert n <= 15, n
        self.q = self.q[last + 1:]
        return f"s_waitcnt lgkmcnt({n})"

    def drain(self):
        self("s_waitcnt lgkmcnt(0)")
        self.q = []


sK, sV, sWQ, sWO, sX, sY = 4, 8, 12, 16, 20, 24
sWAVE, sB, sH, sHALF, sROT, sP = 32, 33, 34, 35, 36, 37
sNEED, sRDY, sSLOT, sCNT, sT0, sT1, sTHR, sNB, sYOFF = 38, 39, 40, 41, 42, 43, 44, 45, 46
sFREE, sSOFF, sPUB, sKOFF, sT2, sT3 = 47, 48, 49, 50, 51, 52
sSPIN = 54
sST = 60
sWS = 76
vLANE, vKC, vVC, vWC, vOC0, vOC1, vA0, vA1, vDONE, vFLAG, vCNT, vTMP = 0, 1, 2, 3, 4, 5, 6, 7, 8, 9, 10, 11
vT = 12
vLT = 16
vL = 19
vM = 22
vXW = 24
vXR = 25
vYA = 26
vA0b = 27
vST = 28
vQ = 32
vQA = 32
vS = 128
vP = 176
vNEG = 224
vY = 128
vYP = 236
aO = 0
aXST = 0
aXF = 168
aF = 192


def S(s, kt, qt):
    return vS + s * 24 + (kt * 3 + qt) * 4


def P(s, qt):
    return vP + s * 12 + qt * 4


def Q(qt, u):
    return vQ + (u * 3 + qt) * 4


def QA(dt, qt):
    return vQA + (dt * 3 + qt) * 4


def O(dt, qt):
    return aO + (dt * 3 + qt) * 4


def vr(b, n=4):
    return f"v[{b}:{b+n-1}]"


def ar(b, n=4):
    return f"a[{b}:{b+n-1}]"


MFMA = "v_mfma_f32_16x16x32_bf16"


class Gen:
    def __init__(self, D=5, NB=8, kvN=20, wN=48, stamps=False, nosync=False, split=28):
        self.a = Asm()
        self.D = D
        self.NB = NB
        self.kvN = kvN
        self.wN = wN
        self.stamps = stamps
        self.nosync = nosync
        self.stubs = []
        self.uid = 0
        self.forced = 0
        self.split = split

    def label(self, p):
        self.uid += 1
        return f"L_{p}{self.uid}"

    def stamp(self, i):
        if self.stamps:
            self.a(f"s_memrealtime s[{sST+2*i}:{sST+2*i+1}]")
            self.a("s_waitcnt lgkmcnt(0)")

    def acquire_ops(self, addr_regs):
        lp, lr = self.label("poll"), self.label("ret")
        ops = []
        ops.append(("s", f"s_add_u32 s{sNEED}, s{sNEED}, 1"))
        if not self.nosync:
            ops.append(("s", f"s_cmp_ge_u32 s{sRDY}, s{sNEED}\ns_cbranch_scc0 {lp}\n{lr}:"))
            self.stubs.append(
                f"{lp}:\n"
                f"ds_read_b32 v{vTMP}, v{vFLAG}\n"
                f"s_waitcnt lgkmcnt(0)\n"
                f"v_readfirstlane_b32 s{sRDY}, v{vTMP}\n"
                f"s_nop 0\n"
                f"s_cmp_ge_u32 s{sRDY}, s{sNEED}\n"
                f"s_cbranch_scc1 {lr}\n"
                f"s_sleep 1\n"
                f"s_add_u32 s{sSPIN}, s{sSPIN}, 1\n"
                f"s_cmp_lt_u32 s{sSPIN}, 0x200000\n"
                f"s_cbranch_scc1 {lp}\n"
                f"s_endpgm")
        for d, c in addr_regs:
            ops.append(("v", f"v_add_u32 v{d}, s{sSLOT}, v{c}"))
        ops.append(("s", f"s_add_u32 s{sSLOT}, s{sSLOT}, {SLOT}"))
        ops.append(("s", f"s_cmp_eq_u32 s{sSLOT}, {SLOT*NSLOT}\ns_cselect_b32 s{sSLOT}, 0, s{sSLOT}"))
        return ops

    def unit_W(self, xf, first=False):
        steps = []
        for dt in range(16):
            off = (dt >> 1) * 64 + (dt & 1) * 8
            rd = lambda b, off=off: [f"ds_read_b64_tr_b16 {ar(b,2)}, v{vA1} offset:{off}",
                                     f"ds_read_b64_tr_b16 {ar(b+2,2)}, v{vA1} offset:{off+512}"]
            mm = lambda b, dt=dt: [f"{MFMA} {vr(QA(dt,qt))}, {ar(b)}, {ar(xf+qt*4)}, {'0' if first else vr(QA(dt,qt))}" for qt in range(3)]
            steps.append((rd, mm))
        return dict(kind="W", steps=steps, addr=[(vA1, vWC)])

    def unit_K(self, s, zero_c=False):
        steps = []
        for kt in range(2):
            for ds in range(8):
                off = kt * 512 + ds * 64
                rd = lambda b, off=off: [f"ds_read_b128 {ar(b)}, v{vA0} offset:{off}"]

                def mm(b, kt=kt, ds=ds):
                    r = []
                    for qt in range(3):
                        c = vr(S(s, kt, qt)) if ds else ("0" if zero_c else vr(vNEG + qt * 4))
                        r.append(f"{MFMA} {vr(S(s,kt,qt))}, {ar(b)}, {vr(Q(qt,ds))}, {c}")
                    return r
                steps.append((rd, mm))
        return dict(kind="K", steps=steps, addr=[(vA0, vKC)])

    def unit_V(self, s):
        steps = []
        for dt in range(16):
            off = dt * 32
            rd = lambda b, off=off: [f"ds_read_b64_tr_b16 {ar(b,2)}, v{vA1} offset:{off}",
                                     f"ds_read_b64_tr_b16 {ar(b+2,2)}, v{vA1} offset:{off+512}"]
            mm = lambda b, dt=dt: [f"{MFMA} {ar(O(dt,qt))}, {ar(b)}, {vr(P(s,qt))}, {ar(O(dt,qt))}" for qt in range(3)]
            steps.append((rd, mm))
        return dict(kind="V", steps=steps, addr=[(vA1, vVC)])

    def unit_O(self, kh, ys, areg):
        steps = []
        for u in range(4):
            for nt in range(4):
                off = u * 4096 + (nt >> 1) * 512
                ad = areg[nt & 1]
                rd = lambda b, off=off, ad=ad: [f"ds_read_b64_tr_b16 {ar(b,2)}, v{ad} offset:{off}",
                                                f"ds_read_b64_tr_b16 {ar(b+2,2)}, v{ad} offset:{off+2048}"]

                def mm(b, u=u, nt=nt):
                    r = []
                    for qt in range(3):
                        y = vY + ys * 48 + (nt * 3 + qt) * 4
                        c = "0" if (kh == 0 and u == 0) else vr(y)
                        r.append(f"{MFMA} {vr(y)}, {ar(b)}, {vr(Q(qt, kh*4+u))}, {c}")
                    return r
                steps.append((rd, mm))
        return dict(kind="O", steps=steps, addr=[(areg[0], vOC0), (areg[1], vOC1)])

    def softmax_ops(self, s, qt):
        x = [S(s, 0, qt) + r for r in range(4)] + [S(s, 1, qt) + r for r in range(4)]
        T = [vT + i for i in range(4)]
        lt = vLT + qt
        p = P(s, qt)
        e = lambda i: ("e", f"v_exp_f32 v{T[i%4]}, v{x[i]}")
        ad = lambda i: ("v", f"v_add_f32 v{lt}, v{lt}, v{T[i%4]}")
        pk = lambda j: ("v", f"v_cvt_pk_bf16_f32 v{p+j}, v{T[(2*j)%4]}, v{T[(2*j+1)%4]}")
        return [e(0), e(1), e(2), ("v", f"v_add_f32 v{lt}, v{T[0]}, v{T[1]}"), pk(0), e(3), e(4), ad(2), e(5), ad(3),
                pk(1), e(6), ad(4), e(7), ad(5), pk(2), ad(6), ad(7), pk(3)]

    def run_units(self, units, fillers, primed, nxt):
        a = self.a
        D, NB = self.D, self.NB
        seq = []
        for u in units:
            for i, st in enumerate(u["steps"]):
                seq.append((u, i, st))
        n = len(seq)
        ext = list(seq)
        if nxt is not None:
            for i, st in enumerate(nxt["steps"]):
                ext.append((nxt, i, st))
        g0 = self.gstep
        buf = lambda k: aF + ((g0 + k) % NB) * 4
        tag = lambda k: ("f", (g0 + k) % NB)
        rp = primed
        while rp < min(D, len(ext)):
            u, i, st = ext[rp]
            if i == 0:
                for _, t in self.acquire_ops(u["addr"]):
                    a(t)
            for r in st[0](buf(rp)):
                a.lds(r, tag(rp))
            rp += 1
        w = a.wait_str(tag(0))
        if w:
            a(w)
        fq = []

        def emit(op):
            if op[0] == "l":
                a.lds(op[1], op[2])
            elif op[0] == "w":
                w = a.wait_str(op[1])
                if w:
                    a(w)
            else:
                a(op[1])
        for k in range(n):
            u, i, st = seq[k]
            fq += fillers.get(k, [])
            last = max([j for j, op in enumerate(fq) if len(op) > 3 and op[3] <= k], default=-1)
            if last >= 0:
                self.forced += last + 1
                for op in fq[:last + 1]:
                    emit(op)
                fq = fq[last + 1:]
                a("s_nop 1")
            mm = st[1](buf(k))
            must = []
            if rp < len(ext) and rp == k + D:
                u2, i2, st2 = ext[rp]
                if i2 == 0:
                    must += self.acquire_ops(u2["addr"])
                for r in st2[0](buf(rp)):
                    must.append(("l", r, tag(rp)))
                rp += 1
            if i == 15:
                must.append(("v", f"v_add_u32 v{vCNT}, 1, v{vCNT}"))
                must.append(("l", f"ds_write_b32 v{vDONE}, v{vCNT}", "done"))
            for g in range(3):
                a(mm[g])
                slots = 3
                vb = 8
                nm = len(must) if g == 2 else -(-len(must) // (3 - g))
                for _ in range(nm):
                    op = must.pop(0)
                    emit(op)
                    if op[0] == "v":
                        vb -= 4
                    slots -= len([x for x in op[1].split("\n") if not x.endswith(":")])
                if g == 2 and k + 1 < len(ext):
                    wstr = a.wait_str(tag(k + 1))
                    if wstr:
                        a(wstr)
                        slots -= 1
                while fq and slots > 0:
                    c = fq[0][0]
                    cost = {"e": 8, "v": 4, "s": 0, "l": 0, "x": 0, "w": 0, "n": 0}[c]
                    if cost > vb:
                        break
                    if g >= 1 and len(fq[0]) > 3 and fq[0][3] <= k + 1 and c in "ve":
                        break
                    op = fq.pop(0)
                    if c == "n":
                        a("s_nop 0")
                        break
                    emit(op)
                    vb -= cost
                    slots -= 2 if c == "e" else 1
        for op in fq:
            emit(op)
        self.left = len(fq)
        self.gstep = g0 + n
        return rp - n

    def rowmax_ops(self, s, qt, dst, tmp):
        x = [S(s, 0, qt) + r for r in range(4)] + [S(s, 1, qt) + r for r in range(4)]
        return "\n".join([
            f"v_max3_f32 v{dst}, v{x[0]}, v{x[1]}, v{x[2]}",
            f"v_max3_f32 v{dst}, v{dst}, v{x[3]}, v{x[4]}",
            f"v_max3_f32 v{dst}, v{dst}, v{x[5]}, v{x[6]}",
            f"v_max_f32 v{dst}, v{dst}, v{x[7]}",
            f"v_mov_b32 v{tmp}, v{dst}",
            "s_nop 1",
            f"v_permlane32_swap_b32 v{tmp}, v{dst}",
            "s_nop 1",
            f"v_max_f32 v{dst}, v{dst}, v{tmp}",
            f"v_mov_b32 v{tmp}, v{dst}",
            "s_nop 1",
            f"v_permlane16_swap_b32 v{tmp}, v{dst}",
            "s_nop 1",
            f"v_max_f32 v{dst}, v{dst}, v{tmp}"])

    def slow_path(self, s, has_next, lbl, ret):
        L = [f"{lbl}:", "s_nop 15"]
        d, t = vM, vM + 1
        for qt in range(3):
            L.append(self.rowmax_ops(s, qt, d, t))
            L.append(f"v_max_f32 v{d}, 0, v{d}")
            for kt in range(2):
                for r in range(4):
                    L.append(f"v_sub_f32 v{S(s,kt,qt)+r}, v{S(s,kt,qt)+r}, v{d}")
                    if has_next:
                        L.append(f"v_sub_f32 v{S(1-s,kt,qt)+r}, v{S(1-s,kt,qt)+r}, v{d}")
            for r in range(4):
                L.append(f"v_sub_f32 v{vNEG+qt*4+r}, v{vNEG+qt*4+r}, v{d}")
            L.append(f"v_sub_f32 v{t}, 0, v{d}")
            L.append(f"v_exp_f32 v{t}, v{t}")
            L.append("s_nop 0")
            L.append(f"v_mul_f32 v{vL+qt}, v{vL+qt}, v{t}")
            for dt in range(16):
                for r in range(4):
                    L.append(f"v_accvgpr_read_b32 v{vT+r}, a{O(dt,qt)+r}")
                for r in range(4):
                    L.append(f"v_mul_f32 v{vT+r}, v{vT+r}, v{t}")
                for r in range(4):
                    L.append(f"v_accvgpr_write_b32 a{O(dt,qt)+r}, v{vT+r}")
            for _, txt in self.softmax_ops(s, qt):
                L.append(txt)
        L.append("s_nop 1")
        L.append(f"s_branch {ret}")
        self.stubs.append("\n".join(L))

    def check(self, s, has_next):
        a = self.a
        lbl, ret = self.label("slow"), self.label("back")
        a(f"v_max3_f32 v{vTMP}, v{vLT}, v{vLT+1}, v{vLT+2}")
        a(f"v_cmp_lt_f32 vcc, s{sTHR}, v{vTMP}")
        a(f"s_cbranch_vccnz {lbl}")
        a(f"{ret}:")
        self.slow_path(s, has_next, lbl, ret)

    def ladd_ops(self):
        return [("v", f"v_add_f32 v{vL+qt}, v{vL+qt}, v{vLT+qt}") for qt in range(3)]

    def setup(self):
        a = self.a
        a("s_cmp_ge_u32 s2, 256")
        a("s_cbranch_scc1 L_end")
        if self.stamps:
            a(f"s_memrealtime s[{sST}:{sST+1}]")
        a(f"s_load_dwordx2 s[{sX}:{sX+1}], s[0:1], 0")
        a(f"s_load_dwordx2 s[{sK}:{sK+1}], s[0:1], 8")
        a(f"s_load_dwordx2 s[{sV}:{sV+1}], s[0:1], 16")
        a(f"s_load_dwordx2 s[{sWQ}:{sWQ+1}], s[0:1], 24")
        a(f"s_load_dwordx2 s[{sWO}:{sWO+1}], s[0:1], 32")
        a(f"s_load_dwordx2 s[{sWS}:{sWS+1}], s[0:1], 56")
        a(f"v_lshrrev_b32 v1, 6, v0")
        a(f"v_and_b32 v{vLANE}, 63, v0")
        a(f"v_readfirstlane_b32 s{sWAVE}, v1")
        a(f"s_and_b32 s{sT0}, s2, 7")
        a(f"s_lshr_b32 s{sT1}, s2, 3")
        a(f"s_and_b32 s{sH}, s{sT1}, 1")
        a(f"s_lshl_b32 s{sT0}, s{sT0}, 1")
        a(f"s_add_u32 s{sH}, s{sH}, s{sT0}")
        a(f"s_bfe_u32 s{sHALF}, s{sT1}, 0x10001")
        a(f"s_lshr_b32 s{sB}, s{sT1}, 2")
        a(f"s_lshr_b32 s{sROT}, s{sT1}, 1")
        a(f"s_cmp_ge_u32 s{sROT}, 14")
        a(f"s_cselect_b32 s{sT0}, 14, 0")
        a(f"s_sub_u32 s{sROT}, s{sROT}, s{sT0}")
        a(f"s_cmp_ge_u32 s{sROT}, 7")
        a(f"s_cselect_b32 s{sT0}, 7, 0")
        a(f"s_sub_u32 s{sNB}, s{sROT}, s{sT0}")
        a(f"s_lshl_b32 s{sP}, s{sB}, 4")
        a(f"s_add_u32 s{sP}, s{sP}, s{sH}")
        a(f"s_lshl_b32 s{sP}, s{sP}, 1")
        a(f"s_add_u32 s{sP}, s{sP}, s{sHALF}")
        a("s_waitcnt lgkmcnt(0)")
        a(f"s_lshl_b32 s{sT0}, s{sP}, 19")
        for r in (sK, sV):
            a(f"s_add_u32 s{r}, s{r}, s{sT0}")
            a(f"s_addc_u32 s{r+1}, s{r+1}, 0")
            a(f"s_mov_b32 s{r+2}, 524288")
            a(f"s_mov_b32 s{r+3}, 0x20000")
        a(f"s_lshl_b32 s{sT0}, s{sH}, 9")
        a(f"s_add_u32 s{sWQ}, s{sWQ}, s{sT0}")
        a(f"s_addc_u32 s{sWQ+1}, s{sWQ+1}, 0")
        a(f"s_sub_u32 s{sWQ+2}, {448*8192}, s{sT0}")
        a(f"s_mov_b32 s{sWQ+3}, 0x20000")
        a(f"s_mul_i32 s{sT0}, s{sH}, {256*896}")
        a(f"s_add_u32 s{sWO}, s{sWO}, s{sT0}")
        a(f"s_addc_u32 s{sWO+1}, s{sWO+1}, 0")
        a(f"s_mov_b32 s{sWO+2}, {256*896}")
        a(f"s_mov_b32 s{sWO+3}, 0x20000")
        a(f"s_mul_i32 s{sT0}, s{sB}, {PART_BYTES}")
        a(f"s_add_u32 s{sX}, s{sX}, s{sT0}")
        a(f"s_addc_u32 s{sX+1}, s{sX+1}, 0")
        a(f"s_mov_b32 s{sX+2}, {PART_BYTES}")
        a(f"s_mov_b32 s{sX+3}, 0x20000")
        a(f"s_mov_b32 s{sY}, s{sWS}")
        a(f"s_mov_b32 s{sY+1}, s{sWS+1}")
        a(f"s_mov_b32 s{sY+2}, {WS_USED}")
        a(f"s_mov_b32 s{sY+3}, 0x20000")
        a(f"s_mov_b32 s{sSPIN}, 0")
        a(f"s_cmp_eq_u32 s{sWAVE}, 3")
        a("s_cbranch_scc1 L_loader")

    def write_stamps(self, n, slotbase):
        a = self.a
        if not self.stamps:
            return
        a(f"s_add_u32 s{sY}, s{sWS}, {STAMP_OFF}")
        a(f"s_addc_u32 s{sY+1}, s{sWS+1}, 0")
        a(f"s_mov_b32 s{sY+2}, 65536")
        a(f"s_lshl_b32 s{sT0}, s2, 7")
        a(f"v_mov_b32 v2, s{sT0}")
        a(f"v_cmp_eq_u32 vcc, 0, v{vLANE}")
        a(f"s_and_saveexec_b64 s[{sT2+1}:{sT2+2}], vcc" if (sT2 + 1) % 2 == 0 else f"s_and_saveexec_b64 s[{sT2}:{sT2+1}], vcc")
        for i in range(n):
            a(f"v_mov_b32 v4, s{sST+2*i}")
            a(f"v_mov_b32 v5, s{sST+2*i+1}")
            a(f"buffer_store_dwordx2 v[4:5], v2, s[{sY}:{sY+3}], 0 offen offset:{(slotbase+i)*8}")
            a("s_nop 1")
        a("s_waitcnt vmcnt(0)")

    def compute(self):
        a = self.a
        D = self.D
        NOP = ("n", "s_nop 1")
        a(f"v_lshrrev_b32 v1, 2, v{vLANE}")
        a(f"v_mul_u32_u24 v1, 896, v1")
        a(f"v_and_b32 v2, 3, v{vLANE}")
        a(f"v_lshl_add_u32 v{vTMP}, v2, 4, v1")
        a(f"s_mul_i32 s{sT0}, s{sWAVE}, {48*896}")
        a(f"s_lshl_b32 s{sT1}, s{sROT}, 6")
        for s in range(14):
            if s:
                a(f"s_add_u32 s{sT1}, s{sT1}, 64")
                a(f"s_cmp_eq_u32 s{sT1}, 896")
                a(f"s_cselect_b32 s{sT1}, 0, s{sT1}")
            a(f"s_add_u32 s{sT2}, s{sT0}, s{sT1}")
            for qt in range(3):
                if qt:
                    a(f"s_add_u32 s{sT2}, s{sT2}, {16*896}")
                a(f"buffer_load_dwordx4 {ar(aXST+(s*3+qt)*4)}, v{vTMP}, s[{sX}:{sX+3}], s{sT2} offen")
        a(f"v_and_b32 v12, 15, v{vLANE}")
        a(f"v_lshrrev_b32 v13, 4, v{vLANE}")
        a(f"v_and_b32 v15, 3, v{vLANE}")
        a(f"v_mul_u32_u24 v{vKC}, 1056, v12")
        a(f"v_lshl_add_u32 v{vKC}, v13, 4, v{vKC}")
        a(f"v_lshrrev_b32 v16, 2, v{vLANE}")
        a(f"v_mul_u32_u24 v16, 1056, v16")
        a(f"v_lshl_add_u32 v{vVC}, v15, 3, v16")
        a(f"v_lshl_add_u32 v{vWC}, v15, 4, v16")
        a(f"v_lshrrev_b32 v16, 5, v{vLANE}")
        a(f"v_lshlrev_b32 v16, 10, v16")
        a(f"v_bfe_u32 v17, v{vLANE}, 2, 3")
        a(f"v_lshl_add_u32 v16, v17, 6, v16")
        a(f"v_lshl_add_u32 v16, v15, 3, v16")
        a(f"v_and_b32 v17, 1, v13")
        a(f"v_lshl_add_u32 v{vOC0}, v17, 5, v16")
        a(f"v_xor_b32 v{vOC1}, 32, v{vOC0}")
        a(f"s_lshl_b32 s{sT0}, s{sWAVE}, 8")
        a(f"s_add_u32 s{sT0}, s{sT0}, {DONE}")
        a(f"v_lshlrev_b32 v16, 2, v{vLANE}")
        a(f"v_add_u32 v{vDONE}, s{sT0}, v16")
        a(f"v_add_u32 v{vFLAG}, {READY}, v16")
        a(f"v_mov_b32 v{vCNT}, 0")
        a(f"s_mul_i32 s{sT0}, s{sWAVE}, 3072")
        a(f"s_add_u32 s{sT0}, s{sT0}, {XS}")
        a(f"v_lshlrev_b32 v{vYA}, 4, v{vLANE}")
        a(f"v_add_u32 v{vXW}, s{sT0}, v{vYA}")
        a(f"v_lshlrev_b32 v16, 6, v12")
        a(f"v_lshl_add_u32 v16, v13, 4, v16")
        a(f"v_add_u32 v{vXR}, s{sT0}, v16")
        a(f"s_mov_b32 s{sNEED}, 0")
        a(f"s_mov_b32 s{sRDY}, 0")
        a(f"s_mov_b32 s{sSLOT}, 0")
        a(f"s_mov_b32 s{sTHR}, {hex(f2u(THR))}")
        a(f"s_mov_b32 s{sT3}, {hex(f2u(QSCALE))}")
        a(f"s_mul_i32 s{sYOFF}, s{sP}, {PART_BYTES}")
        a(f"s_mul_i32 s{sT1}, s{sWAVE}, {3*14*1024}")
        a(f"s_add_u32 s{sYOFF}, s{sYOFF}, s{sT1}")
        a("s_barrier")
        self.stamp(1)

        def xw_ops(s):
            ops = [("s", f"s_waitcnt vmcnt({(13-s)*3})")]
            for qt in range(3):
                ops.append(("l", f"ds_write_b128 v{vXW}, {ar(aXST+(s*3+qt)*4)} offset:{qt*1024}", "xw"))
            return ops

        def xr_ops(s):
            return [("l", f"ds_read_b128 {ar(aXF+(s&1)*12+qt*4)}, v{vXR} offset:{qt*1024}", ("x", s)) for qt in range(3)]

        def zero_ops(lo, hi):
            return [("v", f"v_accvgpr_write_b32 a{i}, 0") for i in range(lo, hi)]
        for op in xw_ops(0) + xr_ops(0):
            if op[0] == "l":
                a.lds(op[1], op[2])
            else:
                a(op[1])
        a(a.wait_str(("x", 0)))
        self.gstep = 0
        Wu = [self.unit_W(aXF + (s & 1) * 12, first=(s == 0)) for s in range(14)]
        K0 = self.unit_K(0, zero_c=True)
        Ku = [self.unit_K(0), self.unit_K(1)]
        Vu = [self.unit_V(0), self.unit_V(1)]
        fl = {}
        add = lambda k, ops: fl.setdefault(k, []).extend(ops)
        for s in range(13):
            add(16 * s + 2, xw_ops(s + 1))
            add(16 * s + 8, xr_ops(s + 1))
            add(16 * s + 14, [("w", ("x", s + 1), None, 16 * (s + 1))])
            add(16 * s + 10, zero_ops(aXST + s * 12, aXST + s * 12 + 12))
        add(16 * 13, zero_ops(aXST + 13 * 12, aXF + 12))
        for u in range(8):
            ops = []
            for qt in range(3):
                for hf in range(2):
                    src = QA(2 * u + hf, qt)
                    for r in range(4):
                        ops.append(("v", f"v_mul_f32 v{src+r}, s{sT3}, v{src+r}"))
                    ops.append(("v", f"v_cvt_pk_bf16_f32 v{Q(qt,u)+hf*2}, v{src}, v{src+1}"))
                    ops.append(("v", f"v_cvt_pk_bf16_f32 v{Q(qt,u)+hf*2+1}, v{src+2}, v{src+3}"))
            ops[-1] = ops[-1] + (None, 16 * 14)
            k0 = 16 * 13 + 2 * u + 1 + 3
            if k0 >= 16 * 14:
                k0 = 16 * 14
                ops = [("s", "s_nop 7")] + ops
            add(k0, ops)
        add(16 * 14 + 1, zero_ops(aXF + 12, aXF + 24))
        primed = self.run_units(Wu + [K0], fl, 0, Ku[1])
        self.stamp(2)
        a("s_nop 7")
        d, t = vM, vM + 1
        for qt in range(3):
            a(self.rowmax_ops(0, qt, d, t))
            for kt in range(2):
                for r in range(4):
                    a(f"v_sub_f32 v{S(0,kt,qt)+r}, v{S(0,kt,qt)+r}, v{d}")
            for r in range(4):
                a(f"v_sub_f32 v{vNEG+qt*4+r}, 0, v{d}")
            a(f"v_mov_b32 v{vL+qt}, 0")
        sm = lambda s: self.softmax_ops(s, 0) + self.softmax_ops(s, 1) + self.softmax_ops(s, 2)
        SPLIT = self.split
        for _, txt in sm(0)[:SPLIT]:
            a(txt)
        a("s_nop 1")
        self.stamp(3)
        a(f"s_mov_b32 s{sCNT}, 0")
        g_entry = self.gstep % self.NB
        q_entry = list(a.q)
        p_entry = primed
        a(".p2align 4")
        a("L_main:")

        def spread(ops, k0, k1):
            tot = sum(8 if o[0] == "e" else 4 for o in ops)
            f = {}
            acc = 0
            for o in ops:
                k = k0 + int(acc * (k1 - k0 + 1) / max(tot, 1))
                f.setdefault(k, []).append(o)
                acc += 8 if o[0] == "e" else 4
            return f

        def stage(s, nxt_after_V, primed):
            primed = self.run_units([Ku[1 - s]], spread(sm(s)[SPLIT:], 0, 14), primed, Vu[s])
            self.check(s, True)
            f = spread(sm(1 - s)[:SPLIT], 1, 15)
            f.setdefault(0, [])
            f[0] = self.ladd_ops() + f[0]
            primed = self.run_units([Vu[s]], f, primed, nxt_after_V)
            return primed
        primed = stage(0, Ku[0], primed)
        primed = stage(1, Ku[1], primed)
        a(f"s_add_u32 s{sCNT}, s{sCNT}, 1")
        a(f"s_cmp_lt_u32 s{sCNT}, 15")
        a("s_cbranch_scc1 L_main")
        assert primed == p_entry and self.gstep % self.NB == g_entry
        assert a.q == q_entry, (a.q, q_entry)
        primed = self.run_units([Ku[1]], spread(sm(0)[SPLIT:], 0, 14), primed, Vu[0])
        self.check(0, True)
        f = {0: self.ladd_ops(), 1: sm(1)}
        primed = self.run_units([Vu[0]], f, primed, Vu[1])
        self.check(1, False)
        self.stamp(4)
        Ou = [self.unit_O(i & 1, (i >> 1) & 1, (vA0, vA0b)) for i in range(14)]
        fl = {}
        add(0, self.ladd_ops())
        for u in range(8):
            ops = []
            for qt in range(3):
                for hf in range(2):
                    src = O(2 * u + hf, qt)
                    T = vT if hf == 0 else vST
                    for r in range(4):
                        ops.append(("v", f"v_accvgpr_read_b32 v{T+r}, a{src+r}"))
                    ops.append(("v", f"v_cvt_pk_bf16_f32 v{Q(qt,u)+hf*2}, v{T}, v{T+1}"))
                    ops.append(("v", f"v_cvt_pk_bf16_f32 v{Q(qt,u)+hf*2+1}, v{T+2}, v{T+3}"))
            ops[-1] = ops[-1] + (None, 16 + 4 * u)
            add(2 * u + 1 + 3, ops)
        st = []
        for qt in range(3):
            l, t = vL + qt, vM
            st += [("v", f"v_mov_b32 v{t}, v{l}"), NOP,
                   ("v", f"v_permlane32_swap_b32 v{t}, v{l}"), NOP,
                   ("v", f"v_add_f32 v{l}, v{l}, v{t}"),
                   ("v", f"v_mov_b32 v{t}, v{l}"), NOP,
                   ("v", f"v_permlane16_swap_b32 v{t}, v{l}"), NOP,
                   ("v", f"v_add_f32 v{vNEG+qt*4+1}, v{l}, v{t}"),
                   ("v", f"v_sub_f32 v{vNEG+qt*4}, 0, v{vNEG+qt*4}")]
        st += [("v", f"v_and_b32 v{vM}, 15, v{vLANE}"),
               ("v", f"v_lshlrev_b32 v{vM}, 4, v{vM}"),
               ("s", f"s_lshr_b32 s{sT0}, s{sP}, 1"),
               ("s", f"s_mul_i32 s{sT0}, s{sT0}, {144*16}"),
               ("s", f"s_mul_i32 s{sT1}, s{sWAVE}, {48*16}"),
               ("s", f"s_add_u32 s{sT0}, s{sT0}, s{sT1}"),
               ("s", f"s_lshl_b32 s{sT1}, s{sHALF}, 3"),
               ("s", f"s_add_u32 s{sT0}, s{sT0}, s{sT1}"),
               ("s", f"s_add_u32 s{sT0}, s{sT0}, {LSE_OFF}")]
        for qt in range(3):
            st.append(("x", f"buffer_store_dwordx2 v[{vNEG+qt*4}:{vNEG+qt*4+1}], v{vM}, s[{sY}:{sY+3}], s{sT0} offen offset:{qt*256}"))
        add(16 + 28, st)
        self.ypk = 0

        def ystore_ops(ys):
            ops = [("s", f"s_lshl_b32 s{sT0}, s{sNB}, 11"), ("s", f"s_add_u32 s{sT0}, s{sT0}, s{sYOFF}")]
            for qt in range(3):
                for pp in range(2):
                    dst = vYP + (self.ypk % 5) * 4
                    self.ypk += 1
                    for hf in range(2):
                        y = vY + ys * 48 + ((2 * pp + hf) * 3 + qt) * 4
                        ops.append(("v", f"v_cvt_pk_bf16_f32 v{dst+hf*2}, v{y}, v{y+1}"))
                        ops.append(("v", f"v_cvt_pk_bf16_f32 v{dst+hf*2+1}, v{y+2}, v{y+3}"))
                    ops.append(("x", f"buffer_store_dwordx4 {vr(dst)}, v{vYA}, s[{sY}:{sY+3}], s{sT0} offen offset:{pp*1024}{self.ystflag}"))
                if qt < 2:
                    ops.append(("s", f"s_add_u32 s{sT0}, s{sT0}, {14*1024}"))
            ops.append(("s", f"s_add_u32 s{sNB}, s{sNB}, 1"))
            ops.append(("s", f"s_cmp_eq_u32 s{sNB}, 7\ns_cselect_b32 s{sNB}, 0, s{sNB}"))
            return ops
        for j in range(6):
            ops = ystore_ops(j & 1)
            ops[-1] = ops[-1] + (None, 16 + 32 * (j + 2))
            add(16 + 32 * (j + 1) + 3, ops)
        primed = self.run_units([Vu[1]] + Ou, fl, primed, None)
        self.stamp(5)
        a("s_nop 7")
        for op in ystore_ops(0):
            a(op[1])
        self.stamp(6)
        if self.stamps:
            a("s_waitcnt vmcnt(0)")
            self.stamp(7)
            a(f"s_cmp_lg_u32 s{sWAVE}, 0")
            a("s_cbranch_scc1 L_end")
            self.write_stamps(8, 0)
        a("s_endpgm")

    def loader(self):
        a = self.a
        a("L_loader:")
        vKV, vW, vWo, vZ, vRA, vDA = 1, 2, 3, 4, 8, 9
        a(f"v_lshrrev_b32 v10, 5, v{vLANE}")
        a(f"v_and_b32 v11, 31, v{vLANE}")
        a(f"v_lshlrev_b32 v11, 4, v11")
        a(f"v_lshl_add_u32 v{vW}, v10, 15, v11")
        a(f"v_lshl_add_u32 v{vKV}, v10, 13, v11")
        a(f"v_bfe_u32 v11, v{vLANE}, 2, 3")
        a(f"v_mul_u32_u24 v{vWo}, 896, v11")
        a(f"v_lshl_add_u32 v{vWo}, v10, 6, v{vWo}")
        a(f"v_bfe_u32 v11, v{vLANE}, 4, 1")
        a(f"v_lshlrev_b32 v11, 1, v11")
        a(f"v_and_b32 v12, 3, v{vLANE}")
        a(f"v_xor_b32 v11, v11, v12")
        a(f"v_lshl_add_u32 v{vWo}, v11, 4, v{vWo}")
        a(f"v_lshlrev_b32 v10, 4, v{vLANE}")
        a(f"v_add_u32 v10, {MISC}, v10")
        for i in range(4):
            a(f"v_mov_b32 v{vZ+i}, 0")
        a(f"ds_write_b128 v10, v[{vZ}:{vZ+3}]")
        a(f"v_lshlrev_b32 v10, 2, v{vLANE}")
        a(f"v_add_u32 v{vRA}, {READY}, v10")
        a(f"v_min_u32 v10, 2, v{vLANE}")
        a(f"v_lshlrev_b32 v10, 8, v10")
        a(f"v_add_u32 v{vDA}, {DONE}, v10")
        a(f"s_mov_b32 s{sSLOT}, 0")
        a(f"s_mov_b32 s{sNEED}, 0")
        a(f"s_mov_b32 s{sFREE}, 0")
        a(f"s_mov_b32 s{sPUB}, 0")
        a(f"s_lshl_b32 s{sKOFF}, s{sROT}, 18")
        a(f"ds_read_b32 v13, v{vDA}")

        def publish(delta):
            a(f"s_sub_i32 s{sT0}, s{sNEED}, {delta}")
            a(f"s_max_i32 s{sPUB}, s{sPUB}, s{sT0}")
            a(f"v_mov_b32 v12, s{sPUB}")
            a(f"ds_write_b32 v{vRA}, v12")

        def getfree():
            a("s_waitcnt lgkmcnt(0)")
            a(f"v_readlane_b32 s{sFREE}, v13, 0")
            a(f"v_readlane_b32 s{sT2}, v13, 1")
            a(f"v_readlane_b32 s{sT3}, v13, 2")
            a("s_nop 0")
            a(f"s_min_u32 s{sFREE}, s{sFREE}, s{sT2}")
            a(f"s_min_u32 s{sFREE}, s{sFREE}, s{sT3}")
            a(f"s_add_u32 s{sT1}, s{sFREE}, {NSLOT-1}")
            a(f"s_cmp_ge_u32 s{sT1}, s{sNEED}")

        def unit(kind, N):
            lw, lg = self.label("lw"), self.label("lg")
            getfree()
            a(f"s_cbranch_scc1 {lg}")
            a("s_waitcnt vmcnt(0)")
            publish(0)
            a(f"{lw}:")
            a(f"ds_read_b32 v13, v{vDA}")
            getfree()
            a(f"s_cbranch_scc1 {lg}")
            a("s_sleep 1")
            a(f"s_add_u32 s{sSPIN}, s{sSPIN}, 1")
            a(f"s_cmp_lt_u32 s{sSPIN}, 0x200000")
            a(f"s_cbranch_scc1 {lw}")
            a("s_endpgm")
            a(f"{lg}:")
            for j in range(16):
                a(f"s_waitcnt vmcnt({N-1})")
                if j == (N - 1) % 16:
                    publish((N - 1) // 16)
                if j == 14:
                    a(f"ds_read_b32 v13, v{vDA}")
                if kind == "O":
                    a(f"s_add_u32 m0, s{sSLOT}, {j*1024}")
                    a(f"s_add_u32 s{sSOFF}, s{sKOFF}, {j*8*896}")
                    a(f"buffer_load_dwordx4 v{vWo}, s[{sWO}:{sWO+3}], s{sSOFF} offen lds")
                elif kind == "W":
                    a(f"s_add_u32 m0, s{sSLOT}, {j*1056}")
                    a(f"s_add_u32 s{sSOFF}, s{sKOFF}, {(8*(j>>2)+(j&3))*8192}")
                    a(f"buffer_load_dwordx4 v{vW}, s[{sWQ}:{sWQ+3}], s{sSOFF} offen lds")
                else:
                    srd, extra = (sK, 16384) if kind == "K" else (sV, 0)
                    if kind == "K0":
                        srd, extra = sK, 0
                    a(f"s_add_u32 m0, s{sSLOT}, {j*1056}")
                    a(f"s_add_u32 s{sSOFF}, s{sKOFF}, {j*512+extra}")
                    a(f"buffer_load_dwordx4 v{vKV}, s[{srd}:{srd+3}], s{sSOFF} offen nt lds")
            a(f"s_add_u32 s{sNEED}, s{sNEED}, 1")
            a(f"s_add_u32 s{sSLOT}, s{sSLOT}, {SLOT}")
            a(f"s_cmp_eq_u32 s{sSLOT}, {SLOT*NSLOT}")
            a(f"s_cselect_b32 s{sSLOT}, 0, s{sSLOT}")

        a("L_lw:")
        unit("W", self.wN)
        a(f"s_add_u32 s{sKOFF}, s{sKOFF}, {32*8192}")
        a(f"s_cmp_eq_u32 s{sKOFF}, {448*8192}")
        a(f"s_cselect_b32 s{sKOFF}, 0, s{sKOFF}")
        a(f"s_cmp_lg_u32 s{sNEED}, 2")
        a("s_cbranch_scc1 L_lw2")
        a("s_barrier")
        a("L_lw2:")
        a(f"s_cmp_lt_u32 s{sNEED}, 14")
        a("s_cbranch_scc1 L_lw")
        self.stamp(1)
        a(f"s_mov_b32 s{sKOFF}, 0")
        unit("K0", self.kvN)
        a("L_lkv:")
        unit("K", self.kvN)
        unit("V", self.kvN)
        a(f"s_add_u32 s{sKOFF}, s{sKOFF}, 16384")
        a(f"s_cmp_lt_u32 s{sKOFF}, {31*16384}")
        a("s_cbranch_scc1 L_lkv")
        unit("V", self.kvN)
        self.stamp(2)
        a("L_lo:")
        a(f"s_lshl_b32 s{sKOFF}, s{sNB}, 7")
        unit("O", self.kvN)
        a(f"s_add_u32 s{sKOFF}, s{sKOFF}, {128*896}")
        unit("O", self.kvN)
        a(f"s_add_u32 s{sNB}, s{sNB}, 1")
        a(f"s_cmp_eq_u32 s{sNB}, 7")
        a(f"s_cselect_b32 s{sNB}, 0, s{sNB}")
        a(f"s_cmp_lt_u32 s{sNEED}, {14+64+14}")
        a("s_cbranch_scc1 L_lo")
        a("s_waitcnt vmcnt(16)")
        publish(1)
        a("s_waitcnt vmcnt(0)")
        publish(0)
        a("s_waitcnt lgkmcnt(0)")
        self.stamp(3)
        self.write_stamps(4, 8)
        a("s_endpgm")

    def reduce_kernel(self):
        a = self.a
        a(".p2align 8")
        a("mha_reduce_kernel:")
        a("s_cmp_ge_u32 s2, 252")
        a("s_cbranch_scc1 L_rend")
        a("s_load_dwordx2 s[4:5], s[0:1], 56")
        a("s_load_dwordx2 s[8:9], s[0:1], 40")
        a("v_lshrrev_b32 v1, 6, v0")
        a("v_and_b32 v0, 63, v0")
        a("v_readfirstlane_b32 s12, v1")
        a("s_lshl_b32 s13, s2, 2")
        a("s_add_u32 s13, s13, s12")
        a(f"s_mul_hi_u32 s14, s13, {(2**32 + 125)//126}")
        a("s_mul_i32 s15, s14, 126")
        a("s_sub_u32 s15, s13, s15")
        a(f"s_mul_hi_u32 s16, s15, {(2**32 + 13)//14}")
        a("s_mul_i32 s17, s16, 14")
        a("s_sub_u32 s17, s15, s17")
        a(f"s_mul_i32 s18, s14, {32*PART_BYTES}")
        a("s_lshl_b32 s19, s15, 10")
        a("s_add_u32 s18, s18, s19")
        a(f"s_mul_i32 s19, s14, {16*144*16}")
        a("s_lshl_b32 s20, s16, 8")
        a("s_add_u32 s19, s19, s20")
        a(f"s_add_u32 s19, s19, {LSE_OFF}")
        a("v_lshlrev_b32 v2, 4, v0")
        a("v_and_b32 v3, 15, v0")
        a("v_lshlrev_b32 v4, 4, v3")
        a("s_waitcnt lgkmcnt(0)")
        a(f"s_mov_b32 s6, {WS_USED}")
        a("s_mov_b32 s7, 0x20000")
        a(f"s_mov_b32 s10, {8*PART_BYTES}")
        a("s_mov_b32 s11, 0x20000")
        vLS, vD, vAcc = 16, 80, 8
        for h in range(16):
            a(f"buffer_load_dwordx4 {vr(vLS+h*4)}, v4, s[4:7], s19 offen")
            a(f"s_add_u32 s19, s19, {144*16}")
        for p in range(32):
            a(f"buffer_load_dwordx4 {vr(vD+p*4)}, v2, s[4:7], s18 offen{self.rdflag}")
            a(f"s_add_u32 s18, s18, {PART_BYTES}")
        a("s_mul_i32 s20, s14, 144")
        a("s_lshl_b32 s21, s16, 4")
        a("s_add_u32 s20, s20, s21")
        a("s_mul_i32 s20, s20, 896")
        a("s_lshl_b32 s21, s17, 6")
        a("s_add_u32 s20, s20, s21")
        a("v_mul_u32_u24 v5, 896, v3")
        a("v_lshrrev_b32 v6, 4, v0")
        a("v_lshl_add_u32 v5, v6, 3, v5")
        for i in range(8):
            a(f"v_mov_b32 v{vAcc+i}, 0")
        a("s_waitcnt vmcnt(32)")
        for h in range(16):
            m0, l0, m1, l1 = (vLS + 4 * h + i for i in range(4))
            a(f"v_sub_f32 v6, v{m1}, v{m0}")
            a(f"v_sub_f32 v7, v{m0}, v{m1}")
            a(f"v_exp_f32 v6, v6")
            a(f"v_exp_f32 v7, v7")
            a(f"v_fma_f32 v6, v6, v{l1}, v{l0}")
            a(f"v_fma_f32 v7, v7, v{l0}, v{l1}")
            a(f"v_rcp_f32 v{m0}, v6")
            a(f"v_rcp_f32 v{m1}, v7")
        for p in range(32):
            a(f"s_waitcnt vmcnt({31-p})")
            for i in range(4):
                d = vD + p * 4 + i
                a(f"v_lshlrev_b32 v6, 16, v{d}")
                a(f"v_and_b32 v7, 0xffff0000, v{d}")
                a(f"v_fmac_f32 v{vAcc+2*i}, v{vLS+2*p}, v6")
                a(f"v_fmac_f32 v{vAcc+2*i+1}, v{vLS+2*p}, v7")
        for i in range(4):
            a(f"v_cvt_pk_bf16_f32 v{vD+i}, v{vAcc+2*i}, v{vAcc+2*i+1}")
        a(f"buffer_store_dwordx2 v[{vD}:{vD+1}], v5, s[8:11], s20 offen")
        a(f"buffer_store_dwordx2 v[{vD+2}:{vD+3}], v5, s[8:11], s20 offen offset:32")
        a("L_rend:")
        a("s_endpgm")

    def build(self, ystflag="", rdflag=""):
        self.ystflag = (" " + ystflag) if ystflag else ""
        self.rdflag = (" " + rdflag) if rdflag else ""
        a = self.a
        hdr = open("cdna_kernels/" + NAME + ".s.ref").read().split("\n")
        for l in hdr:
            if l.startswith(";") and "@launch" not in l and "Override launch" not in l and "grid=ceil" not in l:
                a(l)
        a(f"; @launch kernel={NAME}_kernel grid=(256,1,1) block=(256,1,1) lds={LDS_BYTES}")
        a(f"; @launch kernel=mha_reduce_kernel grid=(252,1,1) block=(256,1,1) lds=0")
        a('.amdgcn_target "amdgcn-amd-amdhsa--gfx950"')
        a(".text")
        a(f".globl {NAME}_kernel")
        a(".p2align 8")
        a(f".type {NAME}_kernel,@function")
        a(f"{NAME}_kernel:")
        self.setup()
        self.compute()
        self.loader()
        for s in self.stubs:
            a(s)
        a("L_end:")
        a("s_endpgm")
        a(".globl mha_reduce_kernel")
        a(".type mha_reduce_kernel,@function")
        self.reduce_kernel()
        a('.section .rodata,"a"')
        for nm, vg, acc in ((NAME + "_kernel", 512, 256), ("mha_reduce_kernel", 208, 208)):
            a(".p2align 6")
            a(f".amdhsa_kernel {nm}")
            a(f"  .amdhsa_next_free_vgpr {vg}")
            a("  .amdhsa_next_free_sgpr 96")
            a(f"  .amdhsa_accum_offset {acc}")
            a("  .amdhsa_group_segment_fixed_size 0")
            a("  .amdhsa_kernarg_size 64")
            a("  .amdhsa_user_sgpr_count 2")
            a("  .amdhsa_user_sgpr_kernarg_segment_ptr 1")
            a("  .amdhsa_system_sgpr_workgroup_id_x 1")
            a("  .amdhsa_float_denorm_mode_32 3")
            a(".end_amdhsa_kernel")
        return "\n".join(a.L) + "\n"


if __name__ == "__main__":
    import argparse
    ap = argparse.ArgumentParser()
    ap.add_argument("-o", default="cdna_kernels/" + NAME + ".s")
    ap.add_argument("--stamps", action="store_true")
    ap.add_argument("--nosync", action="store_true")
    ap.add_argument("--D", type=int, default=5)
    ap.add_argument("--kvN", type=int, default=20)
    ap.add_argument("--wN", type=int, default=48)
    ap.add_argument("--split", type=int, default=28)
    ap.add_argument("--yst", default="")
    ap.add_argument("--rd", default="")
    x = ap.parse_args()
    g = Gen(D=x.D, kvN=x.kvN, wN=x.wN, stamps=x.stamps, nosync=x.nosync, split=x.split)
    open(x.o, "w").write(g.build(x.yst, x.rd))
    print("forced", g.forced, "lines", len(g.a.L))
```
